```python
import torch

def _softmax(x, axis=-1):
    return torch.softmax(x, dim=axis)
def _gelu(x):
    return torch.nn.functional.gelu(x, approximate="tanh")
def _silu(x):
    return torch.nn.functional.silu(x)
def _sigmoid(x):
    return torch.sigmoid(x)
def _layernorm(x, axis=-1, eps=1e-5):
    m = x.mean(dim=axis, keepdim=True)
    v = x.var(dim=axis, keepdim=True, unbiased=False)
    return (x - m) / torch.sqrt(v + eps)
def _scatter_add(tgt, idx, src, axis=0):
    return tgt.clone().index_add_(axis, idx, src)
def _segment_sum(src, seg, n):
    out = torch.zeros((n,) + src.shape[1:], dtype=src.dtype)
    return out.index_add_(0, seg, src)
def _pad(x, pw):
    flat = tuple(v for pair in reversed(pw) for v in pair)
    return torch.nn.functional.pad(x, flat)

kernel_name = 'recurrent_scan__gqa_block_cached__dense_activation_gelu__decode'

def setup_inputs():

    _w = (lambda a: (lambda t: t.to(torch.bfloat16) if t.is_floating_point() else t)(torch.as_tensor(a)))
    def _A_setup():
        B, Sq, D = 2, 1, 512
        Hq, Hkv, Sk, Dh = 32, 8, 32768, 128
        assert Hq % Hkv == 0, (Hq, Hkv)
        return {
            "x": _w((lambda *s: torch.randn(*s, dtype=torch.bfloat16) * 0.1)(B, Sq, D)),
            "k_cache": _w((lambda *s: torch.randn(*s, dtype=torch.bfloat16) * 0.8)(B, Hkv, Sk, Dh)),
            "v_cache": _w((lambda *s: torch.randn(*s, dtype=torch.bfloat16) * 3.2)(B, Hkv, Sk, Dh)),
            "wq": _w((lambda *s: torch.randn(*s, dtype=torch.bfloat16) * 0.8)(D, Hq * Dh) * (D ** -0.5)),
            "wo": _w((lambda *s: torch.randn(*s, dtype=torch.bfloat16) * 3.2)(Hq * Dh, D) * ((Hq * Dh) ** -0.5)),
        }
    _A_in = _A_setup()

    def _B_setup():
        B, S, D, F = 2, 1, 512, 1792
        return {
            "x": _w((lambda *s: torch.randn(*s, dtype=torch.bfloat16) * 0.1)(B, S, D)),
            "w1": _w((lambda *s: torch.randn(*s, dtype=torch.bfloat16) * 3.2)(D, F) * (D ** -0.5)),
            "b1": _w((lambda *s: torch.randn(*s, dtype=torch.bfloat16) * 3.2)(F) * 0.01),
            "w2": _w((lambda *s: torch.randn(*s, dtype=torch.bfloat16) * 3.2)(F, D) * (F ** -0.5)),
            "b2": _w((lambda *s: torch.randn(*s, dtype=torch.bfloat16) * 3.2)(D) * 0.01),
        }
    _B_in = _B_setup()

    return {
        "A_x": _A_in["x"],
        "A_k_cache": _A_in["k_cache"],
        "A_v_cache": _A_in["v_cache"],
        "A_wq": _A_in["wq"],
        "A_wo": _A_in["wo"],
        "B_x": _B_in["x"],
        "B_w1": _B_in["w1"],
        "B_b1": _B_in["b1"],
        "B_w2": _B_in["w2"],
        "B_b2": _B_in["b2"],
    }

def reference(A_x, A_k_cache, A_v_cache, A_wq, A_wo, B_x, B_w1, B_b1, B_w2, B_b2):
    def _A_ref(x, k_cache, v_cache, wq, wo):
        B, Sq, D = x.shape
        Hq, Dh = 32, 128
        Hkv = k_cache.shape[1]
        rep = Hq // Hkv
        q = (lambda x, *d: x.permute(*d))((x @ wq).reshape(B, Sq, Hq, Dh), 0, 2, 1, 3)
        k = (lambda x, n, axis: torch.repeat_interleave(x, n, dim=axis))(k_cache, rep, axis=1)
        v = (lambda x, n, axis: torch.repeat_interleave(x, n, dim=axis))(v_cache, rep, axis=1)
        scores = torch.einsum("bhqd,bhkd->bhqk", q, k) * (Dh ** -0.5)
        p = _softmax(scores, axis=-1)
        o = torch.einsum("bhqk,bhkd->bhqd", p, v)
        return (lambda x, *d: x.permute(*d))(o, 0, 2, 1, 3).reshape(B, Sq, Hq * Dh) @ wo

    def _B_ref(x, w1, b1, w2, b2):
        h = torch.einsum("bsd,df->bsf", x, w1) + b1
        h = _gelu(h)
        return torch.einsum("bsf,fd->bsd", h, w2) + b2

    x = A_x
    xn = _layernorm(x, axis=-1)
    s = _A_ref(xn, A_k_cache, A_v_cache, A_wq, A_wo)
    g = _silu(_B_ref(xn, B_w1, B_b1, B_w2, B_b2))
    return x + s * g
```

```python
import sys
KNAME = "recurrent_scan__gqa_block_cached__dense_activation_gelu__decode_kernel"

def gen(waves=8, window=16, pattern="contig", policy="", nwg=256, order="kv", ring=None, xorwg=0, prof=False):
    per_wave = 512 * 1024 // waves
    nload = per_wave // 1024
    ring = ring or window
    L = []
    A = L.append
    A(f"; @launch grid=({nwg},1,1) block=({waves*64},1,1) lds=0")
    A('.amdgcn_target "amdgcn-amd-amdhsa--gfx950"')
    A(".text")
    A(f".globl {KNAME}")
    A(".p2align 8")
    A(f".type {KNAME},@function")
    A(f"{KNAME}:")
    A(f"  s_cmp_ge_u32 s2, {nwg}")
    A("  s_cbranch_scc1 L_end")
    A("  s_memrealtime s[40:41]")
    A("  s_load_dwordx4 s[4:7], s[0:1], 8")
    A("  s_load_dwordx2 s[8:9], s[0:1], 96")
    A("  v_lshrrev_b32 v1, 6, v0")
    A("  v_and_b32 v2, 63, v0")
    A("  s_nop 0")
    A("  v_readfirstlane_b32 s3, v1")
    A("  s_waitcnt lgkmcnt(0)")
    A("  s_mov_b32 s12, s4"); A("  s_and_b32 s13, s5, 0xffff"); A("  s_mov_b32 s14, 0x8000000"); A("  s_mov_b32 s15, 0x20000")
    A("  s_mov_b32 s16, s6"); A("  s_and_b32 s17, s7, 0xffff"); A("  s_mov_b32 s18, 0x8000000"); A("  s_mov_b32 s19, 0x20000")
    A("  s_mov_b32 s20, s8"); A("  s_and_b32 s21, s9, 0xffff"); A("  s_mov_b32 s22, 0x1000000"); A("  s_mov_b32 s23, 0x20000")
    A(f"  s_xor_b32 s28, s2, {xorwg}")
    A("  s_lshl_b32 s24, s28, 19")
    A(f"  s_mul_i32 s25, s3, {per_wave}")
    A("  s_add_u32 s24, s24, s25")
    if pattern == "contig":
        A("  v_lshlrev_b32 v3, 4, v2")
        offs = lambda i: (i * 1024)
    elif pattern == "mfma":
        A("  v_and_b32 v3, 15, v2"); A("  v_lshlrev_b32 v3, 8, v3")
        A("  v_lshrrev_b32 v4, 4, v2"); A("  v_lshlrev_b32 v4, 4, v4"); A("  v_add_u32 v3, v3, v4")
        offs = lambda i: ((i // 4) * 4096 + (i % 4) * 64)
    elif pattern == "mfma128":
        A("  v_and_b32 v3, 15, v2"); A("  v_lshlrev_b32 v3, 8, v3")
        A("  v_lshrrev_b32 v4, 4, v2"); A("  v_lshlrev_b32 v4, 5, v4"); A("  v_add_u32 v3, v3, v4")
        offs = lambda i: ((i // 4) * 4096 + (i % 2) * 16 + ((i % 4) // 2) * 128)
    elif pattern == "mfma32":
        A("  v_and_b32 v3, 31, v2"); A("  v_lshlrev_b32 v3, 8, v3")
        A("  v_lshrrev_b32 v4, 5, v2"); A("  v_lshlrev_b32 v4, 4, v4"); A("  v_add_u32 v3, v3, v4")
        offs = lambda i: ((i // 8) * 8192 + (i % 8) * 32)
    seq = []
    if order == "kv":
        seq = [("s[12:15]", offs(i)) for i in range(nload)] + [("s[16:19]", offs(i) if pattern == "contig" else i * 1024) for i in range(nload)]
        vpat = [False] * nload + [True] * nload
    elif order == "inter":
        for i in range(0, nload, 8):
            seq += [("s[12:15]", offs(j)) for j in range(i, i + 8)]
            seq += [("s[16:19]", j * 1024) for j in range(i, i + 8)]
        vpat = ([False] * 8 + [True] * 8) * (nload // 8)
    A("  v_lshlrev_b32 v5, 4, v2")
    cur = None
    for n, ((srd, off), isv) in enumerate(zip(seq, vpat)):
        so = off // 4096 * 4096
        io = off % 4096
        key = so
        if key != cur:
            A(f"  s_add_u32 s26, s24, {so}")
            cur = key
        if prof and n % (len(seq)//8) == 0 and n > 0:
            j = n // (len(seq)//8)
            A(f"  s_memrealtime s[{48+2*j}:{49+2*j}]")
        r = 8 + (n % ring) * 4
        if n >= window:
            A(f"  s_waitcnt vmcnt({window-1})")
        A(f"  buffer_load_dwordx4 v[{r}:{r+3}], {'v5' if isv else 'v3'}, {srd}, s26 offen offset:{io} {policy}")
    A("  s_waitcnt vmcnt(0)")
    A("  s_memrealtime s[42:43]")
    A("  s_waitcnt lgkmcnt(0)")
    A(f"  s_mul_i32 s27, s2, {waves}")
    A("  s_add_u32 s27, s27, s3")
    A("  s_lshl_b32 s27, s27, 5")
    A("  s_getreg_b32 s44, hwreg(HW_REG_XCC_ID)")
    A("  s_getreg_b32 s45, hwreg(HW_REG_HW_ID)")
    A("  v_mov_b32 v4, s40"); A("  v_mov_b32 v5, s41"); A("  v_mov_b32 v6, s42"); A("  v_mov_b32 v7, s43")
    A("  v_mov_b32 v8, s44"); A("  v_mov_b32 v9, s45"); A("  v_mov_b32 v10, 0"); A("  v_mov_b32 v11, 0")
    A("  v_mov_b32 v3, 0")
    A("  v_cmp_eq_u32 vcc, 0, v2")
    A("  s_and_saveexec_b64 s[30:31], vcc")
    A("  buffer_store_dwordx4 v[4:7], v3, s[20:23], s27 offen")
    A("  buffer_store_dwordx4 v[8:11], v3, s[20:23], s27 offen offset:16")
    if prof:
        A("  s_lshl_b32 s27, s27, 1")
        A("  s_add_u32 s27, s27, 0x400000")
        A("  s_nop 0")
        for j in range(1, 8):
            A(f"  v_mov_b32 v{4+j}, s{48+2*j}")
        A("  v_mov_b32 v4, s40")
        A("  v_mov_b32 v12, s42")
        A("  buffer_store_dwordx4 v[4:7], v3, s[20:23], s27 offen")
        A("  buffer_store_dwordx4 v[8:11], v3, s[20:23], s27 offen offset:16")
        A("  buffer_store_dword v12, v3, s[20:23], s27 offen offset:32")
    A("L_end:")
    A("  s_endpgm")
    nv = max(16, 8 + ring * 4)
    A('.section .rodata,"a"')
    A(".p2align 6")
    A(f".amdhsa_kernel {KNAME}")
    A(f"  .amdhsa_next_free_vgpr {nv}")
    A("  .amdhsa_next_free_sgpr 80")
    A(f"  .amdhsa_accum_offset {(nv+3)//4*4}")
    A("  .amdhsa_group_segment_fixed_size 0")
    A("  .amdhsa_kernarg_size 104")
    A("  .amdhsa_user_sgpr_count 2")
    A("  .amdhsa_user_sgpr_kernarg_segment_ptr 1")
    A("  .amdhsa_system_sgpr_workgroup_id_x 1")
    A(".end_amdhsa_kernel")
    return "\n".join(L) + "\n"

if __name__ == "__main__":
    import itertools, os
    outdir = sys.argv[1]
    os.makedirs(outdir, exist_ok=True)
    cfgs = []
    for waves, window in [(8, 4), (8, 8), (8, 16), (8, 32), (4, 8), (4, 16), (4, 32), (4, 60), (16, 4), (16, 8)]:
        for pattern in ["contig", "mfma"]:
            for policy in ["", "nt"]:
                cfgs.append((waves, window, pattern, policy, "kv"))
    for pattern in ["mfma128", "mfma32"]:
        for policy in ["", "nt"]:
            cfgs.append((8, 8, pattern, policy, "kv"))
    for policy in ["sc1", "sc0 sc1", "sc1 nt", "sc0 sc1 nt", "sc0 nt"]:
        cfgs.append((8, 8, "contig", policy, "kv"))
    for pattern in ["contig", "mfma"]:
        cfgs.append((8, 8, pattern, "nt", "inter"))
    for (waves, window, pattern, policy, order) in cfgs:
        name = f"bw_w{waves}_d{window}_{pattern}_{policy.replace(' ','') or 'def'}_{order}.s"
        open(os.path.join(outdir, name), "w").write(gen(waves, window, pattern, policy, 256, order))
    for xw in [0, 1, 2, 7]:
        open(os.path.join(outdir, f"prof_w8_d16_x{xw}.s"), "w").write(gen(8, 16, "contig", "nt", 256, "kv", xorwg=xw, prof=True))
    print(len(cfgs))
```
